```python
import torch

def _softmax(x, axis=-1):
    return torch.softmax(x, dim=axis)
def _gelu(x):
    return torch.nn.functional.gelu(x, approximate="tanh")
def _silu(x):
    return torch.nn.functional.silu(x)
def _sigmoid(x):
    return torch.sigmoid(x)
def _layernorm(x, axis=-1, eps=1e-5):
    m = x.mean(dim=axis, keepdim=True)
    v = x.var(dim=axis, keepdim=True, unbiased=False)
    return (x - m) / torch.sqrt(v + eps)
def _scatter_add(tgt, idx, src, axis=0):
    return tgt.clone().index_add_(axis, idx, src)
def _segment_sum(src, seg, n):
    out = torch.zeros((n,) + src.shape[1:], dtype=src.dtype)
    return out.index_add_(0, seg, src)
def _pad(x, pw):
    flat = tuple(v for pair in reversed(pw) for v in pair)
    return torch.nn.functional.pad(x, flat)

kernel_name = 'parallel_sum__ssm_conv_s5__mixer_token_mlp__prompt'

def setup_inputs():

    _w = (lambda a: (lambda t: t.to(torch.bfloat16) if t.is_floating_point() else t)(torch.as_tensor(a)))
    def _A_setup():
        B, S, D = 1, 2048, 576
        P = D
        Lambda_re = -0.5 * (lambda _x: torch.exp(torch.as_tensor(_x)))((lambda *s: torch.randn(*s, dtype=torch.bfloat16) * 0.2)(P))
        Lambda_im = (lambda *s: torch.randn(*s, dtype=torch.bfloat16) * 0.8)(P) * 1.0
        B_re = (lambda *s: torch.randn(*s, dtype=torch.bfloat16) * 0.2)(P, D) * (D ** -0.5)
        B_im = (lambda *s: torch.randn(*s, dtype=torch.bfloat16) * 0.2)(P, D) * (D ** -0.5)
        C_re = (lambda *s: torch.randn(*s, dtype=torch.bfloat16) * 0.2)(D, P) * (P ** -0.5)
        C_im = (lambda *s: torch.randn(*s, dtype=torch.bfloat16) * 0.2)(D, P) * (P ** -0.5)
        log_dt = (lambda *s: torch.randn(*s, dtype=torch.bfloat16) * 0.2)(P) * 0.3 - 2.0
        Dskip = (lambda *s: torch.randn(*s, dtype=torch.bfloat16) * 0.05)(D)
        return {
            "x": _w((lambda *s: torch.randn(*s, dtype=torch.bfloat16) * 0.05)(B, S, D)),
            "Lambda_re": _w(Lambda_re),
            "Lambda_im": _w(Lambda_im),
            "B_re": _w(B_re),
            "B_im": _w(B_im),
            "C_re": _w(C_re),
            "C_im": _w(C_im),
            "log_dt": _w(log_dt),
            "Dskip": _w(Dskip),
        }
    _A_in = _A_setup()

    def _B_setup():
        B, S, D, F = 1, 2048, 576, 4608
        return {
            "x": _w((lambda *s: torch.randn(*s, dtype=torch.bfloat16) * 0.05)(B, S, D)),
            "w1": _w((lambda *s: torch.randn(*s, dtype=torch.bfloat16) * 0.8)(S, F) * (S ** -0.5)),
            "b1": _w((lambda *s: torch.randn(*s, dtype=torch.bfloat16) * 3.2)(F) * 0.02),
            "w2": _w((lambda *s: torch.randn(*s, dtype=torch.bfloat16) * 0.4)(F, S) * (F ** -0.5)),
            "b2": _w((lambda *s: torch.randn(*s, dtype=torch.bfloat16) * 3.2)(S) * 0.02),
        }
    _B_in = _B_setup()

    return {
        "A_x": _A_in["x"],
        "A_Lambda_re": _A_in["Lambda_re"],
        "A_Lambda_im": _A_in["Lambda_im"],
        "A_B_re": _A_in["B_re"],
        "A_B_im": _A_in["B_im"],
        "A_C_re": _A_in["C_re"],
        "A_C_im": _A_in["C_im"],
        "A_log_dt": _A_in["log_dt"],
        "A_Dskip": _A_in["Dskip"],
        "B_x": _B_in["x"],
        "B_w1": _B_in["w1"],
        "B_b1": _B_in["b1"],
        "B_w2": _B_in["w2"],
        "B_b2": _B_in["b2"],
    }

def reference(A_x, A_Lambda_re, A_Lambda_im, A_B_re, A_B_im, A_C_re, A_C_im, A_log_dt, A_Dskip, B_x, B_w1, B_b1, B_w2, B_b2):
    def _A_ref(x, Lambda_re, Lambda_im, B_re, B_im, C_re, C_im, log_dt, Dskip):
        Bsz, L, H = x.shape
        Lam = Lambda_re + 1j * Lambda_im
        Bmat = B_re + 1j * B_im
        Cmat = C_re + 1j * C_im
        dt = torch.exp(log_dt)
        Lam_bar = torch.exp(dt * Lam)
        B_bar = ((Lam_bar - 1.0) / Lam)[:, None] * Bmat
        Bu = torch.einsum("bld,pd->blp", x + 0j, B_bar)
        h = torch.zeros_like(Bu[:, 0, :])
        hs = []
        for t in range(L):
            h = Lam_bar[None, :] * h + Bu[:, t, :]
            hs.append(h)
        hseq = torch.stack(hs, 1)
        y = 2.0 * torch.einsum("blp,dp->bld", hseq, Cmat).real + x * Dskip[None, None, :]
        return y

    def _B_ref(x, w1, b1, w2, b2):
        B, S, D = x.shape
        h = _layernorm(x, axis=-1)
        u = torch.einsum("bsd,sf->bdf", h, w1) + b1
        u = _gelu(u)
        y = torch.einsum("bdf,fs->bds", u, w2) + b2
        return (lambda x, *d: x.permute(*d))(y, 0, 2, 1)

    x = A_x
    xn = _layernorm(x, axis=-1)
    return x + _A_ref(xn, A_Lambda_re, A_Lambda_im, A_B_re, A_B_im, A_C_re, A_C_im, A_log_dt, A_Dskip) + _B_ref(xn, B_w1, B_b1, B_w2, B_b2)
```

```python
NAME = "parallel_sum__ssm_conv_s5__mixer_token_mlp__prompt"

HEADER = open("cdna_kernels/%s.s.ref" % NAME).read().split("; Override launch")[0]

KA = dict(x=0, lre=8, lim=16, bre=24, bim=32, cre=40, cim=48, logdt=56, dskip=64, bx=72, w1=80, b1=88,
          w2=96, b2=104, out=112, dbg=120, ws=128)
WS_BYTES = 268435456


class Kernel:
    def __init__(self, name, grid, block, lds=0):
        self.name = name
        self.grid = grid
        self.block = block
        self.lds = lds
        self.lines = []
        self.nv = 0
        self.na = 0
        self.ns = 0
        self._lab = 0

    def __call__(self, s):
        for l in s.strip("\n").split("\n"):
            l = l.strip()
            if not l:
                continue
            self.lines.append(("" if l.endswith(":") else "    ") + l)

    def c(self, s):
        self.lines.append("    ; " + s)

    def label(self, base="L"):
        self._lab += 1
        return "%s_%s_%d" % (self.name, base, self._lab)

    def srd(self, sreg, ptr_sreg, nbytes, off=0):
        if off:
            self("s_add_u32 s%d, s%d, 0x%x" % (sreg, ptr_sreg, off))
            self("s_addc_u32 s%d, s%d, 0" % (sreg + 1, ptr_sreg + 1))
        else:
            self("s_mov_b32 s%d, s%d" % (sreg, ptr_sreg))
            self("s_mov_b32 s%d, s%d" % (sreg + 1, ptr_sreg + 1))
        self("s_mov_b32 s%d, 0x%x" % (sreg + 2, nbytes))
        self("s_mov_b32 s%d, 0x00020000" % (sreg + 3))

    def body(self):
        import re
        txt = "\n".join(self.lines)
        code = re.sub(r";.*", "", txt)
        def hi(p):
            m = 0
            for a in re.finditer(r"(?<![\w.])%s(\d+)\b" % p, code):
                m = max(m, int(a.group(1)) + 1)
            for a in re.finditer(r"(?<![\w.])%s\[(\d+):(\d+)\]" % p, code):
                m = max(m, int(a.group(2)) + 1)
            return m
        self.nv = max(hi("v"), 1)
        self.na = hi("a")
        self.ns = hi("s")
        assert self.nv <= 256 and self.na <= 256 and self.ns <= 102, (self.nv, self.na, self.ns)
        o = [".p2align 8", ".globl %s" % self.name, ".type %s,@function" % self.name, "%s:" % self.name, txt]
        return "\n".join(o)

    def desc(self, min_vgpr=0):
        acc = (self.nv + 3) // 4 * 4
        nfv = acc + self.na if self.na else self.nv
        nfv = max(nfv, min_vgpr, getattr(self, "min_vgpr", 0))
        if not self.na:
            acc = min(256, (nfv + 3) // 4 * 4)
        return "\n".join([
            ".p2align 6",
            ".amdhsa_kernel %s" % self.name,
            "  .amdhsa_next_free_vgpr %d" % nfv,
            "  .amdhsa_next_free_sgpr %d" % max(self.ns, 16),
            "  .amdhsa_accum_offset %d" % acc,
            "  .amdhsa_group_segment_fixed_size 0",
            "  .amdhsa_kernarg_size 136",
            "  .amdhsa_user_sgpr_count 2",
            "  .amdhsa_user_sgpr_kernarg_segment_ptr 1",
            "  .amdhsa_system_sgpr_workgroup_id_x 1",
            "  .amdhsa_float_denorm_mode_32 3",
            "  .amdhsa_float_denorm_mode_16_64 3",
            "  .amdhsa_dx10_clamp 1",
            "  .amdhsa_ieee_mode 0",
            ".end_amdhsa_kernel"])


def emit(kernels, launches=None):
    launches = launches or kernels
    o = [HEADER.rstrip("\n")]
    for k in launches:
        o.append("; @launch kernel=%s grid=(%d,1,1) block=(%d,1,1) lds=%d" % (k.name, k.grid, k.block, k.lds))
    o.append('.amdgcn_target "amdgcn-amd-amdhsa--gfx950"')
    o.append(".text")
    for k in kernels:
        o.append(k.body())
    o.append('.section .rodata,"a"')
    for k in kernels:
        o.append(k.desc())
    return "\n".join(o) + "\n"


def vr(b, n=1, p="v"):
    return "%s%d" % (p, b) if n == 1 else "%s[%d:%d]" % (p, b, b + n - 1)


def ar(b, n=1):
    return vr(b, n, "a")


def sr(b, n=1):
    return vr(b, n, "s")


class Counter:
    def __init__(self, k, name, maxv):
        self.k, self.name, self.maxv = k, name, maxv
        self.ops = []
        self.done = 0

    def issue(self, tag=None):
        self.ops.append(tag)

    def wait(self, tag):
        idx = [i for i, t in enumerate(self.ops) if t == tag]
        assert idx, "no op with tag %r" % (tag,)
        last = idx[-1]
        if last < self.done:
            return
        n = len(self.ops) - 1 - last
        n = min(n, self.maxv)
        self.k("s_waitcnt %s(%d)" % (self.name, n))
        self.done = max(self.done, len(self.ops) - n)

    def wait_all(self):
        if self.done < len(self.ops):
            self.k("s_waitcnt %s(0)" % self.name)
            self.done = len(self.ops)

    def outstanding(self):
        return len(self.ops) - self.done
```

```python
import sys, struct, math
from asmlib import *

S, D, F, P = 2048, 576, 4608, 576
HH_OFF, HH_SZ = 0x0, 64 * 36 * 1024
ST_OFF, ST_SZ = 0x240000, 2048 * 8
E_OFF, E_SZ = 0x250000, 36 * 32 * 128
HL_OFF, HL_SZ = 0x280000, 32 * 36 * 4096
CP_OFF, CP_SZ = 0x700000, 8 * 4 * 41 * 1024
U_OFF, U_SZ = 0x850000, 8 * 72 * 9216

def f32(x):
    return "0x%08x" % struct.unpack("<I", struct.pack("<f", x))[0]

PX, PLRE, PLIM, PBRE, PBIM, PCRE, PCIM, PLDT = 16, 18, 20, 22, 24, 26, 28, 30
PDSK, PBX, PW1, PB1, PW2, PB2, POUT, PDBG, PWS = 32, 34, 36, 38, 40, 42, 44, 46, 48

def load_ptrs(k):
    k("s_load_dwordx16 s[16:31], s[0:1], 0")
    k("s_load_dwordx16 s[32:47], s[0:1], 64")
    k("s_load_dwordx2 s[48:49], s[0:1], 128")

STAMPS = False
STAMP_OFF = 200 << 20
SV = 252
def stamp(k, idx):
    if STAMPS:
        k("s_memrealtime s[94:95]")
        k("s_waitcnt lgkmcnt(0)")
        k("v_writelane_b32 v%d, s94, %d" % (SV, idx))
def stamp_begin(k):
    if STAMPS:
        k("v_mov_b32 v%d, 0" % SV)
        stamp(k, 0)
def endpgm(k, kid, nw, wait_all=True):
    if STAMPS:
        if wait_all:
            k("s_waitcnt vmcnt(0)")
        stamp(k, 15)
        k.srd(96, PWS, 1 << 20, STAMP_OFF)
        k("s_mul_i32 s100, s2, %d" % nw)
        k("s_add_u32 s100, s100, s3")
        k("s_add_u32 s100, s100, %d" % (kid * 2048))
        k("s_lshl_b32 s100, s100, 6")
        k("s_mov_b64 exec, -1")
        k("v_mbcnt_lo_u32_b32 v3, -1, 0")
        k("v_lshlrev_b32 v3, 2, v3")
        k("s_mov_b64 exec, 0xffff")
        k("buffer_store_dword v%d, v3, s[96:99], s100 offen" % SV)
    k("s_endpgm")

def r16(k, d, s):
    k("v_cvt_pk_bf16_f32 v%d, v%d, v%d" % (d, s, s))
    k("v_lshlrev_b32 v%d, 16, v%d" % (d, d))

def reduce16(k, v):
    for r in (8, 4, 2, 1):
        k("s_nop 1")
        k("v_add_f32_dpp v%d, v%d, v%d row_ror:%d row_mask:0xf bank_mask:0xf" % (v, v, v, r))

def ln_stats_finish(k, mean, var, mb, rs, tmp, s_eps):
    r16(k, mb, mean)
    r16(k, tmp, var)
    k("v_add_f32 v%d, s%d, v%d" % (tmp, s_eps, tmp))
    r16(k, tmp, tmp)
    k("v_sqrt_f32 v%d, v%d" % (tmp, tmp))
    k("s_nop 0")
    r16(k, tmp, tmp)
    k("v_rcp_f32 v%d, v%d" % (rs, tmp))
    k("s_nop 0")

def lam_params(k, vre, vim, vdt, out, tmp, sc):
    k("v_lshlrev_b32 v%d, 16, v%d" % (vre, vre))
    k("v_lshlrev_b32 v%d, 16, v%d" % (vim, vim))
    k("v_lshlrev_b32 v%d, 16, v%d" % (vdt, vdt))
    k("v_mul_f32 v%d, s%d, v%d" % (vdt, sc, vdt))
    k("v_exp_f32 v%d, v%d" % (vdt, vdt))
    k("s_nop 0")
    r16(k, vdt, vdt)
    k("v_mul_f32 v%d, v%d, v%d" % (out, vdt, vre))
    k("v_mul_f32 v%d, v%d, v%d" % (out + 1, vdt, vim))
    k("v_mul_f32 v%d, s%d, v%d" % (out, sc, out))
    k("v_mul_f32 v%d, s%d, v%d" % (out + 1, sc + 1, out + 1))

def cis_exp(k, a, b, ore, oim, tmp):
    k("v_fract_f32 v%d, v%d" % (tmp, b))
    k("v_exp_f32 v%d, v%d" % (ore, a))
    k("v_sin_f32 v%d, v%d" % (oim, tmp))
    k("v_cos_f32 v%d, v%d" % (tmp, tmp))
    k("s_nop 0")
    k("v_mul_f32 v%d, v%d, v%d" % (oim, ore, oim))
    k("v_mul_f32 v%d, v%d, v%d" % (ore, ore, tmp))

def csq(k, re, im, tmp):
    k("v_mul_f32 v%d, v%d, v%d" % (tmp, im, im))
    k("v_mul_f32 v%d, v%d, v%d" % (im, re, im))
    k("v_fma_f32 v%d, v%d, v%d, -v%d" % (re, re, re, tmp))
    k("v_add_f32 v%d, v%d, v%d" % (im, im, im))

def gen_k1(prefetch=True):
    STL = 0
    BR = 1024
    XT = BR + 6 * 12288
    k = Kernel("k1_kernel", 256, 512, lds=XT + 73728)
    done, ln_role, helper = k.label("done"), k.label("ln"), k.label("helper")
    k("s_cmp_ge_u32 s2, 256")
    k("s_cbranch_scc1 %s" % done)
    stamp_begin(k)
    load_ptrs(k)
    k("s_setprio 3")
    k("v_lshrrev_b32 v1, 6, v0")
    k("v_and_b32 v2, 63, v0")
    k("v_readfirstlane_b32 s3, v1")
    k("v_and_b32 v3, 15, v2")
    k("v_lshrrev_b32 v4, 4, v2")
    k("s_mov_b32 s4, 0xffff0000")
    k("s_mov_b32 s5, %s" % f32(1.0 / 576))
    k("s_mov_b32 s6, %s" % f32(1e-5))
    k("s_cmp_ge_u32 s2, 192")
    k("s_cbranch_scc1 %s" % ln_role)

    vm = Counter(k, "vmcnt", 63)
    k("s_and_b32 s7, s2, 7")
    k("s_lshr_b32 s8, s2, 3")
    k("s_mul_i32 s9, s8, 43")
    k("s_lshr_b32 s9, s9, 8")
    k("s_mul_i32 s10, s9, 6")
    k("s_sub_u32 s10, s8, s10")
    k("s_lshl_b32 s7, s7, 2")
    k("s_add_u32 s7, s7, s9")
    k("v_lshrrev_b32 v5, 3, v2")
    k("s_lshl_b32 s11, s7, 6")
    k("s_lshl_b32 s12, s3, 3")
    k("s_add_u32 s11, s11, s12")
    k("v_add_u32 v5, s11, v5")
    k("v_mul_u32_u24 v5, 1152, v5")
    k("v_and_b32 v6, 1, v4")
    k("s_lshr_b32 s12, s3, 1")
    k("s_lshl_b32 s12, s12, 1")
    k("v_or_b32 v6, s12, v6")
    k("v_and_b32 v7, 7, v2")
    k("v_xor_b32 v6, v6, v7")
    k("v_lshl_add_u32 v5, v6, 4, v5")
    k("s_lshl_b32 s13, s3, 10")
    k("s_waitcnt lgkmcnt(0)")
    k.srd(52, PX, S * D * 2)

    def xdma(kc, cnt):
        k("s_add_u32 m0, s13, %d" % (XT + kc * 8192 - 128 * kc))
        k("s_nop 0")
        k("buffer_load_dwordx4 v5, s[52:55], 0 offen offset:%d lds" % (128 * kc))
        cnt.issue(("x", kc))
    for kc in range(9):
        xdma(kc, vm)
    k("s_setprio 0")
    k("s_cmp_ge_u32 s3, 6")
    k("s_cbranch_scc1 %s" % helper)
    k.srd(56, PBRE, P * D * 2)
    k.srd(60, PBIM, P * D * 2)
    k.srd(64, PWS, HL_SZ, HL_OFF)
    k.srd(68, PWS, E_SZ, E_OFF)

    k("s_mul_i32 s14, s10, 6")
    k("s_add_u32 s14, s14, s3")
    k("s_lshl_b32 s15, s14, 4")
    k("v_add_u32 v6, s15, v3")
    k("v_lshrrev_b32 v7, 3, v2")
    k("v_add_u32 v7, s15, v7")
    k("v_mul_u32_u24 v7, 1152, v7")
    k("v_and_b32 v30, 7, v2")
    k("v_xor_b32 v30, v30, v4")
    k("v_xor_b32 v31, 4, v30")
    k("v_lshl_add_u32 v31, v31, 4, v7")
    k("v_lshl_add_u32 v7, v30, 4, v7")
    k("v_add_u32 v30, %d, v31" % (8 * 1152))
    k("v_lshlrev_b32 v6, 1, v6")
    k("s_mul_i32 s87, s3, 12288")
    k("s_add_u32 s87, s87, %d" % BR)
    k.srd(72, PLRE, P * 2)
    k.srd(76, PLIM, P * 2)
    k.srd(80, PLDT, P * 2)
    BB = 96
    ACC = 64
    AF = 32
    BS, ONES = 160, 168
    def bdma(kc):
        for part in range(4):
            k("s_add_u32 m0, s87, %d" % ((kc % 3) * 4096 + part * 1024 - 128 * kc))
            k("s_nop 0")
            k("buffer_load_dwordx4 v%d, %s, 0 offen offset:%d lds" % ((7, 30)[part & 1], sr(56 + 4 * (part >> 1), 4), 128 * kc))
            vm.issue(("b", kc))
    bdma(0)
    k("buffer_load_ushort v8, v6, s[72:75], 0 offen"); vm.issue("par")
    k("buffer_load_ushort v9, v6, s[76:79], 0 offen"); vm.issue("par")
    k("buffer_load_ushort v10, v6, s[80:83], 0 offen"); vm.issue("par")
    bdma(1)
    bdma(2)
    k("v_lshrrev_b32 v11, 2, v3")
    k("v_lshlrev_b32 v11, 4, v11")
    k("v_and_b32 v12, 3, v3")
    k("v_add_u32 v11, v11, v12")
    k("v_lshlrev_b32 v11, 7, v11")
    k("v_add_u32 v11, %d, v11" % XT)
    k("v_lshrrev_b32 v27, 1, v3")
    k("v_xor_b32 v27, v27, v4")
    k("v_xor_b32 v28, 4, v27")
    k("v_lshl_add_u32 v12, v28, 4, v11")
    k("v_lshl_add_u32 v11, v27, 4, v11")
    k("v_lshlrev_b32 v29, 7, v3")
    k("v_add_u32 v29, s87, v29")
    k("v_lshl_add_u32 v27, v27, 4, v29")
    k("v_lshl_add_u32 v28, v28, 4, v29")
    for r in range(32):
        k("v_mov_b32 v%d, 0" % (ACC + r))
    for r in range(8):
        k("v_mov_b32 v%d, 0" % (BS + r))
    for r in range(4):
        k("v_mov_b32 v%d, 0x3f803f80" % (ONES + r))
    k("s_mov_b32 s85, %s" % f32(math.log2(math.e)))
    k("s_mov_b32 s86, %s" % f32(1.0 / (2 * math.pi)))
    lg = Counter(k, "lgkmcnt", 15)
    def aread(ks):
        kc, kk = ks // 2, ks % 2
        for mt in range(4):
            off = (kc % 4) * 8192 + mt * 512
            k("ds_read_b128 %s, v%d offset:%d" % (vr(AF + 16 * (ks % 2) + 4 * mt, 4), 11 + kk, off))
            lg.issue(("a", ks))
    def bread(kc):
        vm.wait(("b", kc))
        for kk in range(2):
            for ri in range(2):
                k("ds_read_b128 %s, v%d offset:%d" % (vr(BB + 16 * (kc % 2) + 8 * kk + 4 * ri, 4), 27 + kk, (kc % 3) * 4096 + 2048 * ri))
                lg.issue(("bt", kc))
    stamp(k, 1)
    vm.wait(("x", 8))
    k("s_barrier")
    stamp(k, 2)
    aread(0)
    bread(0)
    vm.wait("par")
    lam_params(k, 8, 9, 10, 16, 18, 85)
    cis_exp(k, 16, 17, 18, 19, 20)
    k("v_add_f32 v22, -1.0, v18")
    k("v_mul_f32 v23, v8, v8")
    k("v_fma_f32 v23, v9, v9, v23")
    k("v_rcp_f32 v23, v23")
    k("v_mul_f32 v20, v22, v8")
    k("v_fma_f32 v20, v19, v9, v20")
    k("v_mul_f32 v21, v19, v8")
    k("v_fma_f32 v21, -v22, v9, v21")
    k("v_add_f32 v23, v23, v23")
    k("v_mul_f32 v20, v20, v23")
    k("v_mul_f32 v21, v21, v23")
    k("v_mov_b32 v22, v18")
    k("v_mov_b32 v23, v19")
    for _ in range(4):
        csq(k, 22, 23, 24)
    for ks in range(18):
        kc = ks // 2
        if ks + 1 < 18:
            if (ks + 1) % 8 == 0:
                k("v_add_u32 v11, 32768, v11")
                k("v_add_u32 v12, 32768, v12")
            aread(ks + 1)
        lg.wait(("bt", kc))
        lg.wait(("a", ks))
        if ks % 2 == 0 and kc + 3 < 9:
            bdma(kc + 3)
        if ks % 2 == 1 and kc + 1 < 9:
            bread(kc + 1)
        bf = BB + 16 * (kc % 2) + 8 * (ks % 2)
        for mt in range(4):
            a = vr(AF + 16 * (ks % 2) + 4 * mt, 4)
            for ri in range(2):
                acc = vr(ACC + 16 * ri + 4 * mt, 4)
                k("v_mfma_f32_16x16x32_bf16 %s, %s, %s, %s" % (acc, a, vr(bf + 4 * ri, 4), acc))
        for ri in range(2):
            acc = vr(BS + 4 * ri, 4)
            k("v_mfma_f32_16x16x32_bf16 %s, %s, %s, %s" % (acc, vr(ONES, 4), vr(bf + 4 * ri, 4), acc))
    stamp(k, 7)
    k("s_barrier")
    stamp(k, 8)
    k("v_lshlrev_b32 v11, 6, v4")
    k("s_nop 4")
    for q in range(4):
        k("ds_read_b128 %s, v11 offset:%d" % (vr(96 + 4 * q, 4), STL + 16 * q))
        k("ds_read_b128 %s, v11 offset:%d" % (vr(112 + 4 * q, 4), STL + 256 + 16 * q))
    k("v_mov_b32 v26, v%d" % BS)
    k("v_mov_b32 v28, v%d" % (BS + 4))
    k("v_mov_b32 v30, v21")
    k("s_waitcnt lgkmcnt(0)")
    ZR, ZI = 128, 144
    for t in range(0, 16, 2):
        k("v_pk_mul_f32 v[32:33], %s, v[26:27] op_sel_hi:[1,0]" % vr(112 + t, 2))
        k("v_pk_mul_f32 v[34:35], %s, v[28:29] op_sel_hi:[1,0]" % vr(112 + t, 2))
        k("v_pk_fma_f32 v[32:33], %s, %s, v[32:33]" % (vr(ACC + t, 2), vr(96 + t, 2)))
        k("v_pk_fma_f32 v[34:35], %s, %s, v[34:35]" % (vr(ACC + 16 + t, 2), vr(96 + t, 2)))
        k("v_pk_mul_f32 %s, v[32:33], v[20:21] op_sel_hi:[1,0]" % vr(ZR + t, 2))
        k("v_pk_mul_f32 %s, v[34:35], v[20:21] op_sel_hi:[1,0]" % vr(ZI + t, 2))
        k("v_pk_fma_f32 %s, v[34:35], v[30:31], %s op_sel_hi:[1,0,1] neg_lo:[1,0,0] neg_hi:[1,0,0]" % (vr(ZR + t, 2), vr(ZR + t, 2)))
        k("v_pk_fma_f32 %s, v[32:33], v[30:31], %s op_sel_hi:[1,0,1]" % (vr(ZI + t, 2), vr(ZI + t, 2)))
    def step(hr, hi, nr, ni, t):
        k("v_fma_f32 v%d, -v19, v%d, v%d" % (nr, hi, ZR + t))
        k("v_fma_f32 v%d, v19, v%d, v%d" % (ni, hr, ZI + t))
        k("v_fma_f32 v%d, v18, v%d, v%d" % (nr, hr, nr))
        k("v_fma_f32 v%d, v18, v%d, v%d" % (ni, hi, ni))
    cur = (ZR, ZI)
    for t in range(1, 16):
        nxt = (32, 33) if t % 2 else (34, 35)
        step(cur[0], cur[1], nxt[0], nxt[1], t)
        cur = nxt
    assert cur == (32, 33)
    for d in (1, 2, 3):
        k("v_subrev_u32 v36, %d, v2" % (16 * d))
        k("v_and_b32 v36, 63, v36")
        k("v_lshlrev_b32 v36, 2, v36")
        k("ds_bpermute_b32 v%d, v36, v32" % (38 + 2 * d))
        k("ds_bpermute_b32 v%d, v36, v33" % (39 + 2 * d))
    k("s_waitcnt lgkmcnt(0)")
    for d in (1, 2, 3):
        k("v_cmp_le_u32 vcc, %d, v4" % d)
        k("s_nop 1")
        k("v_cndmask_b32 v%d, 0, v%d, vcc" % (38 + 2 * d, 38 + 2 * d))
        k("v_cndmask_b32 v%d, 0, v%d, vcc" % (39 + 2 * d, 39 + 2 * d))
    for (cr, ci, nr, ni) in ((44, 45, 42, 43), (42, 43, 40, 41)):
        k("v_fma_f32 v%d, -v23, v%d, v%d" % (nr, ci, nr))
        k("v_fma_f32 v%d, v23, v%d, v%d" % (ni, cr, ni))
        k("v_fma_f32 v%d, v22, v%d, v%d" % (nr, cr, nr))
        k("v_fma_f32 v%d, v22, v%d, v%d" % (ni, ci, ni))
    k("s_mov_b32 s15, s87")
    k("v_lshlrev_b32 v36, 10, v4")
    k("v_lshl_add_u32 v36, v3, 2, v36")
    k("v_add_u32 v36, s15, v36")
    cur = (40, 41)
    for t in range(16):
        nxt = (32, 33) if t % 2 else (34, 35)
        step(cur[0], cur[1], nxt[0], nxt[1], t)
        cur = nxt
        k("v_cvt_pk_bf16_f32 v%d, v%d, -v%d" % (46 + t % 2, cur[0], cur[1]))
        k("ds_write_b32 v36, v%d offset:%d" % (46 + t % 2, 64 * t))
    assert cur == (32, 33)
    k("s_lshl_b32 s88, s14, 5")
    k("s_add_u32 s88, s88, s7")
    k("s_lshl_b32 s88, s88, 7")
    k("v_lshlrev_b32 v37, 3, v3")
    k("v_cmp_eq_u32 vcc, 3, v4")
    k("s_and_saveexec_b64 s[90:91], vcc")
    k("buffer_store_dwordx2 v[32:33], v37, s[68:71], s88 offen")
    k("s_mov_b64 exec, s[90:91]")
    k("v_lshlrev_b32 v36, 6, v3")
    k("v_lshl_add_u32 v36, v4, 4, v36")
    k("v_add_u32 v36, s15, v36")
    k("s_waitcnt lgkmcnt(0)")
    for c in range(4):
        k("ds_read_b128 %s, v36 offset:%d" % (vr(48 + 4 * c, 4), 1024 * c))
    k("s_mul_i32 s88, s7, 36")
    k("s_add_u32 s88, s88, s14")
    k("s_lshl_b32 s88, s88, 12")
    k("v_lshlrev_b32 v37, 4, v2")
    for c in range(4):
        k("s_waitcnt lgkmcnt(%d)" % (3 - c))
        k("buffer_store_dwordx4 %s, v37, s[64:67], s88 offen offset:%d" % (vr(48 + 4 * c, 4), 1024 * c))
    endpgm(k, 0, 8)

    k(helper + ":")
    k("s_sub_u32 s14, s3, 6")
    k("s_lshl_b32 s14, s14, 12")
    k("v_lshlrev_b32 v6, 6, v2")
    k("v_add_u32 v6, s14, v6")
    k("v_add_u32 v6, %d, v6" % XT)
    k("v_lshrrev_b32 v7, 2, v2")
    k("v_and_b32 v7, 3, v7")
    for qq in range(4):
        k("v_xor_b32 v8, %d, v7" % qq)
        k("v_lshl_add_u32 v%d, v8, 4, v6" % (10 + qq))
    for r in range(16, 24):
        k("v_mov_b32 v%d, 0" % r)
    k("s_mov_b32 s84, 0x3f803f80")
    stamp(k, 1)
    k("s_waitcnt vmcnt(0)")
    k("s_barrier")
    stamp(k, 2)
    for (k0, k1) in [(0, 3), (3, 6), (6, 9)]:
        for kc in range(k0, k1):
            if kc == 4:
                for qq in range(4):
                    k("v_add_u32 v%d, 32768, v%d" % (10 + qq, 10 + qq))
            if kc == 8:
                for qq in range(4):
                    k("v_add_u32 v%d, 32768, v%d" % (10 + qq, 10 + qq))
            for qq in range(4):
                k("ds_read_b128 %s, v%d offset:%d" % (vr(32 + 16 * (kc - k0) + 4 * qq, 4), 10 + qq, (kc % 4) * 8192))
        for kc in range(k0, k1):
            k("s_waitcnt lgkmcnt(%d)" % (4 * (k1 - 1 - kc)))
            for j in range(16):
                r = 32 + 16 * (kc - k0) + j
                k("v_dot2c_f32_bf16 v%d, s84, v%d" % (16 + j % 4, r))
                k("v_dot2c_f32_bf16 v%d, v%d, v%d" % (20 + j % 4, r, r))
    k("s_nop 2")
    for b in (16, 20):
        k("v_add_f32 v%d, v%d, v%d" % (b, b, b + 1))
        k("v_add_f32 v%d, v%d, v%d" % (b + 2, b + 2, b + 3))
        k("v_add_f32 v%d, v%d, v%d" % (b, b, b + 2))
    k("s_nop 1")
    k("v_add_f32_dpp v16, v16, v16 quad_perm:[1,0,3,2] row_mask:0xf bank_mask:0xf")
    k("v_add_f32_dpp v20, v20, v20 quad_perm:[1,0,3,2] row_mask:0xf bank_mask:0xf")
    k("v_mul_f32 v16, s5, v16")
    k("v_mul_f32 v20, s5, v20")
    k("v_fma_f32 v20, -v16, v16, v20")
    k("v_max_f32 v20, 0, v20")
    ln_stats_finish(k, 16, 20, 17, 18, 19, 6)
    k("v_mul_f32 v17, v17, v18")
    k("v_sub_f32 v17, 0, v17")
    k("v_and_b32 v7, 1, v2")
    k("v_cmp_eq_u32 vcc, 1, v7")
    k("v_lshrrev_b32 v8, 1, v2")
    k("v_lshlrev_b32 v8, 2, v8")
    k("v_cndmask_b32 v18, v18, v17, vcc")
    k("v_lshl_add_u32 v8, v7, 8, v8")
    k("s_lshr_b32 s14, s14, 5")
    k("v_add_u32 v8, s14, v8")
    k("ds_write_b32 v8, v18 offset:%d" % STL)
    k("s_waitcnt lgkmcnt(0)")
    k("s_barrier")
    endpgm(k, 0, 8)

    k(ln_role + ":")
    PITCH = 1184
    k("s_sub_u32 s7, s2, 192")
    k("s_lshl_b32 s8, s3, 2")
    k("v_add_u32 v5, s8, v4")
    k("s_lshl_b32 s9, s7, 5")
    k("v_add_u32 v6, s9, v5")
    k("v_mul_u32_u24 v7, 1152, v6")
    k("v_lshl_add_u32 v7, v3, 3, v7")
    k("s_waitcnt lgkmcnt(0)")
    k.srd(52, PX, S * D * 2)
    k.srd(56, PWS, HH_SZ, HH_OFF)
    k.srd(60, PWS, ST_SZ, ST_OFF)
    PK, FF = 16, 40
    for j in range(9):
        k("buffer_load_dwordx2 %s, v7, s[52:55], 0 offen offset:%d" % (vr(PK + 2 * j, 2), 128 * j))
    npf = 0
    if prefetch:
        k.srd(64, PW1, S * F * 2)
        k("s_and_b32 s10, s2, 7")
        k("s_mul_i32 s10, s10, 27")
        k("s_mul_i32 s10, s10, 43")
        k("s_lshr_b32 s10, s10, 8")
        k("s_lshl_b32 s10, s10, 8")
        k("s_lshr_b32 s11, s7, 3")
        k("s_lshl_b32 s11, s11, 3")
        k("s_add_u32 s11, s11, s3")
        k("s_mul_i32 s11, s11, %d" % (32 * 9216))
        k("s_add_u32 s10, s10, s11")
        k("v_mul_u32_u24 v8, 9216, v4")
        k("v_lshl_add_u32 v8, v3, 4, v8")
        for rg in range(8):
            for cb in range(5):
                k("buffer_load_dwordx4 v[80:83], v8, s[64:67], s10 offen offset:%d" % (256 * cb))
                npf += 1
            if rg < 7:
                k("s_add_u32 s10, s10, %d" % (4 * 9216))
    k("s_waitcnt vmcnt(%d)" % min(npf, 63))
    stamp(k, 1)

    def ln(store_stats):
        for j in range(18):
            k("v_lshlrev_b32 v%d, 16, v%d" % (FF + 2 * j, PK + j))
            k("v_and_b32 v%d, s4, v%d" % (FF + 2 * j + 1, PK + j))
        k("v_pk_add_f32 v[8:9], %s, %s" % (vr(FF, 2), vr(FF + 2, 2)))
        k("v_pk_add_f32 v[10:11], %s, %s" % (vr(FF + 4, 2), vr(FF + 6, 2)))
        for j in range(4, 18):
            a = 8 + 2 * (j % 2)
            k("v_pk_add_f32 %s, %s, %s" % (vr(a, 2), vr(a, 2), vr(FF + 2 * j, 2)))
        k("v_pk_add_f32 v[8:9], v[8:9], v[10:11]")
        k("v_add_f32 v8, v8, v9")
        reduce16(k, 8)
        k("v_mul_f32 v8, s5, v8")
        for j in range(18):
            d = 12 + 2 * (j % 2)
            k("v_pk_add_f32 %s, %s, v[8:9] op_sel_hi:[1,0] neg_lo:[0,1] neg_hi:[0,1]" % (vr(d, 2), vr(FF + 2 * j, 2)))
            q = 34 + 2 * (j % 2)
            if j < 2:
                k("v_pk_mul_f32 %s, %s, %s" % (vr(q, 2), vr(d, 2), vr(d, 2)))
            else:
                k("v_pk_fma_f32 %s, %s, %s, %s" % (vr(q, 2), vr(d, 2), vr(d, 2), vr(q, 2)))
        k("v_pk_add_f32 v[34:35], v[34:35], v[36:37]")
        k("v_add_f32 v34, v34, v35")
        reduce16(k, 34)
        k("v_mul_f32 v34, s5, v34")
        ln_stats_finish(k, 8, 34, 10, 11, 12, 6)
        k("v_mov_b32 v34, v11")
        if store_stats:
            k("v_lshlrev_b32 v12, 3, v6")
            k("v_cmp_eq_u32 vcc, 0, v3")
            k("s_and_saveexec_b64 s[90:91], vcc")
            k("buffer_store_dwordx2 v[10:11], v12, s[60:63], 0 offen")
            k("s_mov_b64 exec, s[90:91]")
        for j in range(18):
            d = 12 + 2 * (j % 2)
            k("v_pk_add_f32 %s, %s, v[10:11] op_sel_hi:[1,0] neg_lo:[0,1] neg_hi:[0,1]" % (vr(d, 2), vr(FF + 2 * j, 2)))
            k("v_cvt_pk_bf16_f32 v%d, v%d, v%d" % (PK + j, d, d + 1))
            k("v_lshlrev_b32 v%d, 16, v%d" % (d, PK + j))
            k("v_and_b32 v%d, s4, v%d" % (d + 1, PK + j))
            k("v_pk_mul_f32 %s, %s, v[34:35] op_sel_hi:[1,0]" % (vr(d, 2), vr(d, 2)))
            k("v_cvt_pk_bf16_f32 v%d, v%d, v%d" % (PK + j, d, d + 1))
    ln(True)
    stamp(k, 2)
    ln(False)
    stamp(k, 3)
    k("v_mul_u32_u24 v8, %d, v5" % PITCH)
    k("v_lshl_add_u32 v8, v3, 3, v8")
    for j in range(9):
        k("ds_write_b64 v8, %s offset:%d" % (vr(PK + 2 * j, 2), 128 * j))
    k("v_lshrrev_b32 v9, 2, v3")
    k("v_lshl_add_u32 v9, v4, 2, v9")
    k("v_mul_u32_u24 v9, %d, v9" % PITCH)
    k("v_and_b32 v10, 3, v3")
    k("v_lshl_add_u32 v9, v10, 3, v9")
    k("s_lshl_b32 s8, s3, 5")
    k("v_add_u32 v9, s8, v9")
    k("s_mul_i32 s9, s7, 36")
    k("s_add_u32 s9, s9, s3")
    k("s_lshl_b32 s9, s9, 10")
    k("v_lshlrev_b32 v10, 4, v2")
    k("s_waitcnt lgkmcnt(0)")
    k("s_barrier")
    for m in range(5):
        for h in range(2):
            k("ds_read_b64_tr_b16 %s, v9 offset:%d" % (vr(40 + 4 * m + 2 * h, 2), 256 * m + 16 * PITCH * h))
    skip = k.label("skip")
    for m in range(5):
        k("s_waitcnt lgkmcnt(%d)" % (2 * (4 - m)))
        if m == 4:
            k("s_cmp_ge_u32 s3, 4")
            k("s_cbranch_scc1 %s" % skip)
        k("buffer_store_dwordx4 %s, v10, s[56:59], s9 offen" % vr(40 + 4 * m, 4))
        k("s_add_u32 s9, s9, 8192")
    k(skip + ":")
    endpgm(k, 0, 8)
    k(done + ":")
    k("s_endpgm")
    return k


UDB = 72 * 9216
CDB = 4 * 41 * 1024

def dt_dest(k, sdt, sm, sq, t0):
    k("s_mul_i32 s%d, s%d, 57" % (sm, sdt))
    k("s_lshr_b32 s%d, s%d, 9" % (sm, sm))
    k("s_mul_i32 s%d, s%d, 9" % (t0, sm))
    k("s_sub_u32 s%d, s%d, s%d" % (sq, sdt, t0))

def tr_addrs(k, vout, n, sbase, srot, vtmp):
    a, b = vtmp, vtmp + 1
    k("v_lshrrev_b32 v%d, 2, v3" % a)
    k("v_lshl_add_u32 v%d, v4, 2, v%d" % (a, a))
    k("v_lshlrev_b32 v%d, 7, v%d" % (a, a))
    k("v_and_b32 v%d, 3, v3" % b)
    k("v_lshl_add_u32 v%d, v%d, 3, v%d" % (a, b, a))
    k("v_add_u32 v%d, s%d, v%d" % (a, sbase, a))
    k("v_and_b32 v%d, 1, v4" % b)
    k("v_lshlrev_b32 v%d, 1, v%d" % (b, b))
    k("v_lshrrev_b32 v%d, 3, v3" % vout)
    k("v_or_b32 v%d, v%d, v%d" % (b, b, vout))
    for c in range(n):
        if srot is None:
            k("v_xor_b32 v%d, %d, v%d" % (vout + c, c & 3, b))
            k("v_lshl_add_u32 v%d, v%d, 5, v%d" % (vout + c, vout + c, a))
            if c >> 2:
                k("v_add_u32 v%d, %d, v%d" % (vout + c, (c >> 2) * 4096, vout + c))
        else:
            k("s_add_u32 s90, s%d, %d" % (srot, c))
            k("s_and_b32 s90, s90, %d" % (n - 1))
            k("s_and_b32 s91, s90, 3")
            k("s_lshr_b32 s90, s90, 2")
            k("s_lshl_b32 s90, s90, 12")
            k("v_xor_b32 v%d, s91, v%d" % (vout + c, b))
            k("v_lshl_add_u32 v%d, v%d, 5, v%d" % (vout + c, vout + c, a))
            k("v_add_u32 v%d, s90, v%d" % (vout + c, vout + c))

def dma_voffs(k, vout, stride, vtmp):
    k("v_lshrrev_b32 v%d, 3, v2" % vout)
    k("v_mul_u32_u24 v%d, %d, v%d" % (vout, stride, vout))
    k("v_and_b32 v%d, 7, v2" % vtmp)
    k("v_lshlrev_b32 v%d, 1, v4" % (vtmp + 1))
    k("v_xor_b32 v%d, v%d, v%d" % (vtmp, vtmp, vtmp + 1))
    k("v_lshl_add_u32 v%d, v%d, 4, v%d" % (vout, vtmp, vout))
    for n in range(1, 4):
        k("v_add_u32 v%d, %d, v%d" % (vout + n, n * (8 * stride - 1024), vout))

def gelu_pk(k, x, t, sc):
    X, T = vr(x, 2), vr(t, 2)
    k("v_pk_mul_f32 %s, %s, %s" % (T, X, X))
    k("v_pk_fma_f32 %s, %s, %s, %s" % (T, T, vr(sc, 2), vr(sc + 2, 2)))
    k("v_pk_mul_f32 %s, %s, %s" % (T, T, X))
    k("v_exp_f32 v%d, v%d" % (t, t))
    k("v_exp_f32 v%d, v%d" % (t + 1, t + 1))
    k("s_nop 0")
    k("v_pk_add_f32 %s, %s, 1.0 op_sel_hi:[1,0]" % (T, T))
    k("v_rcp_f32 v%d, v%d" % (t, t))
    k("v_rcp_f32 v%d, v%d" % (t + 1, t + 1))
    k("s_nop 0")
    k("v_pk_mul_f32 %s, %s, %s" % (X, X, T))

def gen_k2(LA=2, RA=3, prefetch=True, wpol=""):
    k = Kernel("k2_kernel", 256, 256, lds=147456)
    done, fix = k.label("done"), k.label("fix")
    k("s_cmp_ge_u32 s2, 256")
    k("s_cbranch_scc1 %s" % done)
    stamp_begin(k)
    load_ptrs(k)
    k("v_lshrrev_b32 v1, 6, v0")
    k("v_and_b32 v2, 63, v0")
    k("v_readfirstlane_b32 s3, v1")
    k("v_and_b32 v3, 15, v2")
    k("v_lshrrev_b32 v4, 4, v2")
    k("s_mov_b32 s4, 0xffff0000")
    k("s_cmp_ge_u32 s2, 216")
    k("s_cbranch_scc1 %s" % fix)
    NS = LA + 1
    k("s_and_b32 s5, s2, 7")
    k("s_mul_i32 s5, s5, 27")
    k("s_lshr_b32 s6, s2, 3")
    k("s_add_u32 s5, s5, s6")
    k("s_mul_i32 s6, s5, 43691")
    k("s_lshr_b32 s6, s6, 18")
    k("s_mul_i32 s7, s6, 6")
    k("s_sub_u32 s7, s5, s7")
    VD, VA, VT = 8, 12, 16
    WF, OWN, HB = 24, 56, 104
    dma_voffs(k, VD, 9216, 14)
    k("v_lshlrev_b32 v12, 4, v2")
    k("v_add_u32 v13, 4096, v12")
    k("s_lshl_b32 s8, s3, 15")
    k("s_mul_i32 s9, s3, %d" % (512 * 9216))
    k("s_lshl_b32 s10, s6, 8")
    k("s_add_u32 s9, s9, s10")
    k("s_add_u32 s10, s9, 128")
    k("s_mul_i32 s11, s3, %d" % (16 * 36))
    k("s_mul_i32 s12, s7, 6")
    k("s_add_u32 s11, s11, s12")
    k("s_lshl_b32 s11, s11, 10")
    k("s_waitcnt lgkmcnt(0)")
    k.srd(52, PW1, S * F * 2)
    k.srd(56, PWS, HH_SZ, HH_OFF)
    vm = Counter(k, "vmcnt", 63)
    lg = Counter(k, "lgkmcnt", 15)
    def loads(t):
        o = []
        for ch in range(2):
            for n in range(4):
                def f(ch=ch, n=n):
                    if n == 0:
                        k("s_add_u32 m0, s8, %d" % ((t % 4) * 8192 + ch * 4096))
                        k("s_nop 0")
                    k("buffer_load_dwordx4 v%d, s[52:55], s%d offen offset:%d %s lds" % (VD + n, 9 + ch, 1024 * n, wpol))
                    vm.issue(("w", t))
                    if n == 3:
                        k("s_add_u32 s%d, s%d, %d" % (9 + ch, 9 + ch, 32 * 9216))
                o.append(f)
        for dt in range(6):
            def f(dt=dt):
                k("buffer_load_dwordx4 %s, v%d, s[56:59], s11 offen offset:%d" % (vr(HB + 24 * (t % NS) + 4 * dt, 4), VA + dt // 4, 1024 * (dt % 4)))
                vm.issue(("h", t))
                if dt == 5:
                    k("s_add_u32 s11, s11, %d" % (36 * 1024))
            o.append(f)
        return o
    for t in range(LA):
        for f in loads(t):
            f()
    k("s_lshl_b32 s13, s3, 1")
    tr_addrs(k, VT, 8, 8, 13, 14)
    k.srd(60, PB1, F * 2)
    k.srd(64, PWS, U_SZ, U_OFF)
    def acc(dt, c):
        return vr(OWN + 8 * dt + 4 * c, 4) if c < 2 else ar((dt * 6 + c - 2) * 4, 4)
    def wread(gi):
        t, c = gi // 8, gi % 8
        if t >= 16:
            return
        if c == 0:
            vm.wait(("w", t))
        for h in range(2):
            k("ds_read_b64_tr_b16 %s, v%d offset:%d" % (vr(WF + 4 * c + 2 * h, 2), VT + c, (t % 4) * 8192 + 2048 * h))
            lg.issue(("W", gi))
    stamp(k, 1)
    for gi in range(RA):
        wread(gi)
    for t in range(16):
        pend = loads(t + LA) if t + LA < 16 else []
        for c in range(8):
            gi = 8 * t + c
            wread(gi + RA)
            if c == 0:
                vm.wait(("h", t))
            lg.wait(("W", gi))
            for dt in range(6):
                k("v_mfma_f32_16x16x32_bf16 %s, %s, %s, %s" % (acc(dt, c), vr(WF + 4 * c, 4), vr(HB + 24 * (t % NS) + 4 * dt, 4),
                                                             "0" if t == 0 else acc(dt, c)))
                if dt in (1, 3) and pend and c >= 1:
                    pend.pop(0)()
        while pend:
            pend.pop(0)()
        if t == 13:
            k("s_lshl_b32 s14, s6, 8")
            k("s_lshl_b32 s15, s3, 6")
            k("s_add_u32 s14, s14, s15")
            k("v_lshlrev_b32 v5, 3, v4")
            k("buffer_load_dwordx2 v[6:7], v5, s[60:63], s14 offen"); vm.issue("bias")
            k("buffer_load_dwordx2 v[14:15], v5, s[60:63], s14 offen offset:32"); vm.issue("bias")
    stamp(k, 2)
    k("s_barrier")
    stamp(k, 3)
    for j in range(1, 4):
        k("s_add_u32 s14, s3, %d" % j)
        k("s_and_b32 s14, s14, 3")
        k("s_mul_i32 s14, s14, %d" % (3 * 12288))
        k("s_add_u32 s14, s14, %d" % ((j - 1) * 12288))
        k("v_add_u32 v%d, s14, v12" % (8 + j))
    for j in range(1, 4):
        for dt in range(6):
            for e in range(2):
                k("ds_write_b128 v%d, %s offset:%d" % (8 + j, acc(dt, 2 * j + e), (dt * 2 + e) * 1024))
    k("s_mul_i32 s14, s3, %d" % (3 * 12288))
    k("v_add_u32 v8, s14, v12")
    k("s_lshl_b32 s14, s6, 1")
    k("s_lshr_b32 s15, s3, 1")
    k("s_add_u32 s14, s14, s15")
    k("s_mul_i32 s14, s14, 9216")
    k("s_and_b32 s15, s3, 1")
    k("v_lshrrev_b32 v16, 3, v3")
    k("s_mov_b32 s68, %d" % UDB)
    k("v_mul_lo_u32 v16, v16, s68")
    k("v_and_b32 v17, 7, v3")
    k("v_lshl_add_u32 v17, v4, 4, v17")
    k("s_lshl_b32 s69, s15, 3")
    k("v_add_u32 v17, s69, v17")
    k("v_lshl_add_u32 v16, v17, 4, v16")
    k("v_add_u32 v16, 8192, v16")
    k("s_lshl_b32 s15, s15, 12")
    c0 = -2.0 * math.log2(math.e) * math.sqrt(2.0 / math.pi)
    k("v_mov_b32 v20, %s" % f32(c0 * 0.044715)); k("v_mov_b32 v21, v20")
    k("v_mov_b32 v22, %s" % f32(c0)); k("v_mov_b32 v23, v22")
    vm.wait("bias")
    BI = 24
    for e, r in ((0, 6), (1, 14)):
        for h in range(2):
            k("v_lshlrev_b32 v%d, 16, v%d" % (BI + 4 * e + 2 * h, r + h))
            k("v_and_b32 v%d, s4, v%d" % (BI + 4 * e + 2 * h + 1, r + h))
    k("s_waitcnt lgkmcnt(0)")
    k("s_barrier")
    stamp(k, 4)
    RB = 104
    lg = Counter(k, "lgkmcnt", 15)
    def rd(dt):
        for j in range(3):
            for e in range(2):
                k("ds_read_b128 %s, v8 offset:%d" % (vr(RB + 24 * dt + 8 * j + 4 * e, 4), j * 12288 + (dt * 2 + e) * 1024))
                lg.issue(("r", dt))
    rd(0); rd(1)
    for dt in range(6):
        k("s_mul_i32 s70, s7, 6")
        k("s_add_u32 s70, s70, %d" % dt)
        dt_dest(k, 70, 71, 72, 73)
        k("s_mul_i32 s71, s71, %d" % (2 * UDB))
        k("s_add_u32 s71, s71, s14")
        k("s_lshl_b32 s73, s72, 10")
        k("s_add_u32 s73, s73, s15")
        k("s_cmp_gt_u32 s72, 4")
        k("s_cselect_b32 s74, %d, 0" % (UDB - 5 * 1024))
        k("s_add_u32 s73, s73, s74")
        k("s_cmp_eq_u32 s72, 4")
        k("s_cselect_b32 s73, 0, s73")
        k("s_cselect_b64 s[76:77], -1, 0")
        k("s_add_u32 s71, s71, s73")
        k("v_cndmask_b32 v17, v12, v16, s[76:77]")
        lg.wait(("r", dt))
        if dt + 2 < 6:
            rd(dt + 2)
        o = OWN + 8 * dt
        for p in range(0, 8, 2):
            b = RB + 24 * dt + p
            k("v_pk_add_f32 %s, %s, %s" % (vr(b, 2), vr(b, 2), vr(b + 8, 2)))
            k("v_pk_add_f32 %s, %s, %s" % (vr(o + p, 2), vr(o + p, 2), vr(b + 16, 2)))
            k("v_pk_add_f32 %s, %s, %s" % (vr(b, 2), vr(b, 2), vr(BI + p, 2)))
            k("v_pk_add_f32 %s, %s, %s" % (vr(o + p, 2), vr(o + p, 2), vr(b, 2)))
        for p in range(0, 8, 2):
            gelu_pk(k, o + p, 32 + p, 20)
        d = 40 + 4 * (dt % 2)
        for p in range(0, 8, 2):
            k("v_cvt_pk_bf16_f32 v%d, v%d, v%d" % (d + p // 2, o + p, o + p + 1))
        k("buffer_store_dwordx4 %s, v17, s[64:67], s71 offen" % vr(d, 4))
    endpgm(k, 1, 4)

    k(fix + ":")
    pf = k.label("pf")
    k("s_sub_u32 s5, s2, 216")
    k("s_mov_b32 s85, %s" % f32(math.log2(math.e)))
    k("s_mov_b32 s86, %s" % f32(1.0 / (2 * math.pi)))
    k("s_waitcnt lgkmcnt(0)")
    k("s_cmp_ge_u32 s5, 36")
    k("s_cbranch_scc1 %s" % pf)
    k.srd(52, PWS, E_SZ, E_OFF)
    k.srd(56, PWS, HL_SZ, HL_OFF)
    k.srd(60, PLRE, P * 2)
    k.srd(64, PLIM, P * 2)
    k.srd(68, PLDT, P * 2)
    vm = Counter(k, "vmcnt", 63)
    k("s_lshl_b32 s6, s5, 5")
    k("v_lshlrev_b32 v5, 3, v4")
    for r, sd in ((6, 60), (8, 64), (10, 68)):
        k("buffer_load_dwordx2 %s, v5, %s, s6 offen" % (vr(r, 2), sr(sd, 4))); vm.issue("par")
    nochain = k.label("nochain")
    k("s_cmp_lg_u32 s3, 0")
    k("s_cbranch_scc1 %s" % nochain)
    k("v_lshlrev_b32 v5, 1, v3")
    for r, sd in ((12, 60), (13, 64), (14, 68)):
        k("buffer_load_ushort v%d, v5, %s, s6 offen" % (r, sr(sd, 4)))
    k("s_lshl_b32 s7, s5, 12")
    k("v_lshlrev_b32 v5, 3, v3")
    for j in range(31):
        k("buffer_load_dwordx2 %s, v5, s[52:55], s7 offen offset:%d" % (vr(64 + 2 * j, 2), 128 * j))
    k("s_waitcnt vmcnt(31)")
    lam_params(k, 12, 13, 14, 16, 18, 85)
    k("v_mul_f32 v16, 64.0, v16" if False else "v_mul_f32 v16, 0x42800000, v16")
    k("v_mul_f32 v17, 0x42800000, v17")
    cis_exp(k, 16, 17, 18, 19, 20)
    k("v_mov_b32 v20, 0")
    k("v_mov_b32 v21, 0")
    k("ds_write_b64 v5, v[20:21]")
    k("s_waitcnt vmcnt(0)")
    for j in range(31):
        cr, ci = (20, 21) if j == 0 else (64 + 2 * (j - 1), 65 + 2 * (j - 1))
        er, ei = 64 + 2 * j, 65 + 2 * j
        k("v_fma_f32 v%d, -v19, v%d, v%d" % (er, ci, er))
        k("v_fma_f32 v%d, v19, v%d, v%d" % (ei, cr, ei))
        k("v_fma_f32 v%d, v18, v%d, v%d" % (er, cr, er))
        k("v_fma_f32 v%d, v18, v%d, v%d" % (ei, ci, ei))
        k("ds_write_b64 v5, %s offset:%d" % (vr(er, 2), 128 * (j + 1)))
    k("s_waitcnt lgkmcnt(0)")
    k(nochain + ":")
    k("s_mul_i32 s7, s3, %d" % (8 * 36))
    k("s_add_u32 s7, s7, s5")
    k("s_lshl_b32 s7, s7, 12")
    k("s_mov_b32 s8, s7")
    k("v_lshlrev_b32 v5, 4, v2")
    HLR = 64
    for m in range(8):
        for c in range(4):
            k("buffer_load_dwordx4 %s, v5, s[56:59], s8 offen offset:%d" % (vr(HLR + 16 * m + 4 * c, 4), 1024 * c)); vm.issue(("h", m))
        k("s_add_u32 s8, s8, %d" % (36 * 4096))
    vm.wait("par")
    TB = 192
    k("v_add_u32 v24, 1, v3")
    k("v_cvt_f32_u32 v24, v24")
    for q in range(4):
        for r, d in ((6, 12), (8, 13), (10, 14)):
            if q % 2:
                k("v_lshrrev_b32 v%d, 16, v%d" % (d, r + q // 2))
            else:
                k("v_and_b32 v%d, 0xffff, v%d" % (d, r + q // 2))
        lam_params(k, 12, 13, 14, 16, 18, 85)
        for c in range(4):
            k("v_add_f32 v25, %s, v24" % f32(16.0 * c))
            k("v_mul_f32 v18, v25, v16")
            k("v_mul_f32 v19, v25, v17")
            cis_exp(k, 18, 19, TB + 8 * c + 2 * q, TB + 8 * c + 2 * q + 1, 20)
    k("s_barrier")
    k("s_lshl_b32 s9, s3, 10")
    k("v_lshlrev_b32 v6, 5, v4")
    k("v_add_u32 v6, s9, v6")
    k("s_mov_b32 s8, s7")
    for m in range(8):
        cb = 24 + 8 * (m % 2)
        k("ds_read_b128 %s, v6 offset:%d" % (vr(cb, 4), 128 * m))
        k("ds_read_b128 %s, v6 offset:%d" % (vr(cb + 4, 4), 128 * m + 16))
        vm.wait(("h", m))
        k("s_waitcnt lgkmcnt(0)")
        for c in range(4):
            for q in range(4):
                h = HLR + 16 * m + 4 * c + q
                tr_, ti = TB + 8 * c + 2 * q, TB + 8 * c + 2 * q + 1
                cr, ci = cb + 2 * q, cb + 2 * q + 1
                a, b = 40 + 2 * (q % 2), 41 + 2 * (q % 2)
                k("v_lshlrev_b32 v%d, 16, v%d" % (a, h))
                k("v_and_b32 v%d, s4, v%d" % (b, h))
                k("v_fma_f32 v%d, v%d, v%d, v%d" % (a, tr_, cr, a))
                k("v_fma_f32 v%d, -v%d, v%d, v%d" % (b, tr_, ci, b))
                k("v_fma_f32 v%d, -v%d, v%d, v%d" % (a, ti, ci, a))
                k("v_fma_f32 v%d, -v%d, v%d, v%d" % (b, ti, cr, b))
                k("v_cvt_pk_bf16_f32 v%d, v%d, v%d" % (h, a, b))
            k("buffer_store_dwordx4 %s, v5, s[56:59], s8 offen offset:%d" % (vr(HLR + 16 * m + 4 * c, 4), 1024 * c)); vm.issue("st")
        k("s_add_u32 s8, s8, %d" % (36 * 4096))
    stamp(k, 1)
    k.srd(60, PCRE, D * P * 2)
    k.srd(64, PCIM, D * P * 2)
    k.srd(52, PWS, CP_SZ, CP_OFF)
    k("s_lshl_b32 s6, s5, 4")
    k("v_add_u32 v6, s6, v3")
    k("v_mul_u32_u24 v6, 1152, v6")
    k("v_lshl_add_u32 v6, v4, 3, v6")
    k("s_mul_i32 s6, s3, %d" % (9 * 32))
    for st in range(9):
        k("buffer_load_dwordx2 %s, v6, s[60:63], s6 offen offset:%d" % (vr(192 + 4 * st, 2), 32 * st)); vm.issue(("c", st))
        k("buffer_load_dwordx2 %s, v6, s[64:67], s6 offen offset:%d" % (vr(194 + 4 * st, 2), 32 * st)); vm.issue(("c", st))
    dt_dest(k, 5, 71, 72, 73)
    k("s_mul_i32 s71, s71, %d" % (2 * CDB))
    k("s_mul_i32 s73, s3, %d" % (41 * 1024))
    k("s_add_u32 s71, s71, s73")
    k("s_lshl_b32 s73, s72, 10")
    k("s_cmp_gt_u32 s72, 4")
    k("s_cselect_b32 s74, %d, 0" % (CDB - 5 * 1024))
    k("s_add_u32 s73, s73, s74")
    k("s_cmp_eq_u32 s72, 4")
    k("s_cselect_b32 s73, 0, s73")
    k("s_cselect_b64 s[76:77], -1, 0")
    k("s_add_u32 s71, s71, s73")
    k("v_lshrrev_b32 v7, 3, v3")
    k("s_mov_b32 s78, %d" % CDB)
    k("v_mul_lo_u32 v7, v7, s78")
    k("v_and_b32 v8, 7, v3")
    k("v_lshl_add_u32 v8, v4, 4, v8")
    k("v_lshl_add_u32 v7, v8, 4, v7")
    k("v_add_u32 v8, 8192, v7")
    k("v_add_u32 v9, %d, v7" % (8192 + 128))
    k("v_add_u32 v10, 4096, v7")
    k("v_add_u32 v11, 4096, v5")
    k("v_cndmask_b32 v8, v5, v8, s[76:77]")
    k("v_cndmask_b32 v9, v11, v9, s[76:77]")
    k("v_cndmask_b32 v10, v5, v10, s[76:77]")
    k("s_mov_b32 s79, 0x05040100")
    k("s_mov_b32 s80, 0x07060302")
    for st in range(9):
        vm.wait(("c", st))
        r = 192 + 4 * st
        d = 12 + 4 * (st % 3)
        k("v_perm_b32 v%d, v%d, v%d, s79" % (d, r + 2, r))
        k("v_perm_b32 v%d, v%d, v%d, s80" % (d + 1, r + 2, r))
        k("v_perm_b32 v%d, v%d, v%d, s79" % (d + 2, r + 3, r + 1))
        k("v_perm_b32 v%d, v%d, v%d, s80" % (d + 3, r + 3, r + 1))
        k("buffer_store_dwordx4 %s, v%d, s[52:55], s71 offen" % (vr(d, 4), 10 if st == 8 else 8 + st % 2)); vm.issue("st")
        if st % 2:
            k("s_add_u32 s71, s71, 9216")
    stamp(k, 2)
    k(pf + ":")
    if prefetch:
        k.srd(52, PW2, F * S * 2)
        k("s_lshr_b32 s6, s5, 3")
        k("s_lshl_b32 s6, s6, 2")
        k("s_add_u32 s6, s6, s3")
        k("s_lshl_b32 s6, s6, 16")
        k("s_and_b32 s7, s5, 7")
        k("s_lshl_b32 s7, s7, 9")
        k("s_add_u32 s6, s6, s7")
        k("v_lshrrev_b32 v6, 2, v2")
        k("v_lshlrev_b32 v6, 12, v6")
        k("v_and_b32 v7, 3, v2")
        k("v_lshl_add_u32 v6, v7, 7, v6")
        for a in range(15):
            k("buffer_load_dword v7, v6, s[52:55], s6 offen")
            k("s_add_u32 s6, s6, %d" % (20 * 65536))
    endpgm(k, 1, 4)
    k(done + ":")
    k("s_endpgm")
    return k


def gen_k3(LA=4, RA=4, wpol=""):
    k = Kernel("k3_kernel", 256, 256, lds=131072)
    done = k.label("done")
    k("s_cmp_ge_u32 s2, 256")
    k("s_cbranch_scc1 %s" % done)
    stamp_begin(k)
    load_ptrs(k)
    k("v_lshrrev_b32 v1, 6, v0")
    k("v_and_b32 v2, 63, v0")
    k("v_readfirstlane_b32 s3, v1")
    k("v_and_b32 v3, 15, v2")
    k("v_lshrrev_b32 v4, 4, v2")
    k("s_mov_b32 s4, 0xffff0000")
    k("s_and_b32 s5, s2, 7")
    k("s_lshl_b32 s5, s5, 2")
    k("s_lshr_b32 s6, s2, 6")
    k("s_add_u32 s5, s5, s6")
    k("s_lshr_b32 s6, s2, 3")
    k("s_and_b32 s6, s6, 7")
    VD, VA, VT, VL = 8, 12, 16, 20
    WF, OWN, UB = 24, 56, 80
    NSP = 3
    assert LA <= 4
    dma_voffs(k, VD, 4096, 14)
    k("v_lshlrev_b32 v12, 4, v2")
    k("v_add_u32 v13, 4096, v12")
    k("v_add_u32 v14, 8192, v12")
    k("s_lshl_b32 s8, s3, 15")
    k("s_mul_i32 s9, s3, %d" % (1152 * 4096))
    k("s_lshl_b32 s10, s5, 7")
    k("s_add_u32 s9, s9, s10")
    k("s_mul_i32 s10, s6, %d" % UDB)
    k("s_mul_i32 s11, s3, %d" % (18 * 9216))
    k("s_add_u32 s10, s10, s11")
    k("s_mul_i32 s11, s5, 36")
    k("s_mul_i32 s12, s3, 9")
    k("s_add_u32 s11, s11, s12")
    k("s_lshl_b32 s11, s11, 12")
    k("s_mul_i32 s12, s6, %d" % CDB)
    k("s_mul_i32 s13, s3, %d" % (41 * 1024))
    k("s_add_u32 s12, s12, s13")
    k("s_waitcnt lgkmcnt(0)")
    k.srd(52, PW2, F * S * 2)
    k.srd(56, PWS, U_SZ, U_OFF)
    k.srd(60, PWS, HL_SZ, HL_OFF)
    k.srd(64, PWS, CP_SZ, CP_OFF)
    vm = Counter(k, "vmcnt", 63)
    lg = Counter(k, "lgkmcnt", 15)
    NT = 45
    def ureg(t, j):
        b = UB + 36 * ((t >> 1) % NSP)
        return b + 32 if j == 4 else b + 16 * (t & 1) + 4 * j
    def loads(t):
        o = []
        g2 = t < 36
        for n in range(4):
            def f(n=n):
                if n == 0:
                    k("s_add_u32 m0, s8, %d" % ((t % 8) * 4096))
                    k("s_nop 0")
                if g2:
                    k("buffer_load_dwordx4 v%d, s[52:55], s9 offen offset:%d %s lds" % (VD + n, 1024 * n, wpol))
                else:
                    k("buffer_load_dwordx4 v12, s[60:63], s11 offen offset:%d lds" % (1024 * n))
                vm.issue(("w", t))
                if n == 3:
                    if g2:
                        k("s_add_u32 s9, s9, %d" % (32 * 4096))
                    else:
                        k("s_add_u32 s11, s11, 4096")
            o.append(f)
        srd, so = ("s[56:59]", 10) if g2 else ("s[64:67]", 12)
        par = t & 1
        js = [0, 1, 2, 3] + ([4] if par == 0 else [])
        for j in js:
            def f(j=j):
                if j < 4:
                    k("buffer_load_dwordx4 %s, v%d, %s, s%d offen offset:%d" % (vr(ureg(t, j), 4), VA + par, srd, so, 1024 * j))
                else:
                    k("buffer_load_dwordx4 %s, v%d, %s, s%d offen" % (vr(ureg(t, j), 4), VA + (1 if t == NT - 1 else 2), srd, so))
                vm.issue(("u", t))
                if par == 1 and j == 3:
                    k("s_add_u32 s%d, s%d, 9216" % (so, so))
            o.append(f)
        return o
    for t in range(LA):
        for f in loads(t):
            f()
    tr_addrs(k, VT, 4, 8, 3, 6)
    for c in range(4):
        k("s_add_u32 s90, s3, %d" % c)
        k("s_and_b32 s90, s90, 3")
        k("s_lshl_b32 s90, s90, 10")
        k("s_add_u32 s90, s90, s8")
        k("v_add_u32 v%d, s90, v12" % (VL + c))
    k.srd(68, PX, S * D * 2)
    k.srd(72, PDSK, D * 2)
    k.srd(76, PWS, ST_SZ, ST_OFF)
    k.srd(80, PB2, S * 2)
    k.srd(84, POUT, S * D * 4)
    def acc(c, j):
        return vr(OWN + 4 * j, 4) if c == 0 else ar(((c - 1) * 6 + j) * 4, 4)
    def wread(gi):
        t, c = gi // 4, gi % 4
        if t >= NT:
            return
        if c == 0:
            vm.wait(("w", t))
        b = WF + 4 * (gi % 8)
        if t < 36:
            for h in range(2):
                k("ds_read_b64_tr_b16 %s, v%d offset:%d" % (vr(b + 2 * h, 2), VT + c, (t % 8) * 4096 + 2048 * h))
                lg.issue(("W", gi))
        else:
            k("ds_read_b128 %s, v%d offset:%d" % (vr(b, 4), VL + c, (t % 8) * 4096))
            lg.issue(("W", gi))
    stamp(k, 1)
    for gi in range(RA):
        wread(gi)
    EX, ED, ES, EB = 188, 198, 208, 210
    for t in range(NT):
        pend = loads(t + LA) if t + LA < NT else []
        for c in range(4):
            gi = 4 * t + c
            wread(gi + RA)
            if c == 0:
                vm.wait(("u", t))
            lg.wait(("W", gi))
            for j in range(5):
                aj = j if j < 4 else 4 + (t & 1)
                first = (t == 0) or (j == 4 and t == 1)
                k("v_mfma_f32_16x16x32_bf16 %s, %s, %s, %s" % (acc(c, aj), vr(ureg(t, j), 4), vr(WF + 4 * (gi % 8), 4),
                                                             "0" if first else acc(c, aj)))
                if j in (0, 2, 4) and pend and (c >= 1):
                    pend.pop(0)()
        while pend:
            pend.pop(0)()
        if t == NT - LA - 1:
            k("s_lshl_b32 s13, s5, 6")
            k("s_lshl_b32 s14, s3, 4")
            k("s_add_u32 s13, s13, s14")
            k("v_add_u32 v5, s13, v3")
            k("s_lshr_b32 s13, s6, 1")
            k("s_mul_i32 s13, s13, 144")
            k("s_and_b32 s14, s6, 1")
            k("s_mul_i32 s15, s14, 80")
            k("s_add_u32 s15, s15, s13")
            k("s_lshl_b32 s14, s14, 3")
            k("s_add_u32 s14, s14, s13")
            k("s_add_u32 s14, s14, 64")
            k("s_lshl_b32 s88, s15, 1")
            k("s_lshl_b32 s89, s14, 1")
            k("v_mul_u32_u24 v6, 1152, v5")
            k("v_lshlrev_b32 v7, 3, v4")
            k("v_add_u32 v6, v6, v7")
            for j in range(5):
                so, im = (88, 32 * j) if j < 4 else (89, 0)
                k("buffer_load_dwordx2 %s, v6, s[68:71], s%d offen offset:%d" % (vr(EX + 2 * j, 2), so, im)); vm.issue("e")
                k("buffer_load_dwordx2 %s, v7, s[72:75], s%d offen offset:%d" % (vr(ED + 2 * j, 2), so, im)); vm.issue("e")
            k("v_lshlrev_b32 v7, 3, v5")
            k("buffer_load_dwordx2 %s, v7, s[76:79], 0 offen" % vr(ES, 2)); vm.issue("e")
            k("v_lshlrev_b32 v7, 1, v5")
            k("buffer_load_ushort v%d, v7, s[80:83], 0 offen" % EB); vm.issue("e")
            k("v_lshlrev_b32 v6, 1, v6")
            k("s_lshl_b32 s88, s88, 1")
            k("s_lshl_b32 s89, s89, 1")
    stamp(k, 2)
    k("s_barrier")
    stamp(k, 3)
    for c in range(4):
        k("s_add_u32 s13, s3, %d" % c)
        k("s_and_b32 s13, s13, 3")
        k("s_mul_i32 s13, s13, %d" % (4 * 6144))
        k("s_add_u32 s13, s13, %d" % (((c - 1) % 4) * 6144))
        k("v_add_u32 v%d, s13, v12" % (8 + c))
    for c in range(1, 4):
        for j in range(6):
            k("ds_write_b128 v%d, %s offset:%d" % (8 + c, acc(c, j), j * 1024))
    k("ds_write_b128 v8, %s offset:%d" % (acc(0, 5), 5 * 1024))
    k("s_mul_i32 s13, s3, %d" % (4 * 6144))
    k("v_add_u32 v16, s13, v12")
    k("v_xor_b32 v17, 512, v16")
    vm.wait("e")
    k("v_lshlrev_b32 v%d, 16, v%d" % (EB, EB))
    k("v_mov_b32 v%d, v%d" % (EB + 2, ES + 1))
    for j in range(5):
        for h in range(2):
            x, dsk, o = EX + 2 * j + h, ED + 2 * j + h, 24 + 4 * j + 2 * h
            k("v_lshlrev_b32 v%d, 16, v%d" % (o, x))
            k("v_and_b32 v%d, s4, v%d" % (o + 1, x))
            k("v_pk_add_f32 v[44:45], %s, %s op_sel_hi:[1,0] neg_lo:[0,1] neg_hi:[0,1]" % (vr(o, 2), vr(ES, 2)))
            k("v_cvt_pk_bf16_f32 v46, v44, v45")
            k("v_lshlrev_b32 v44, 16, v46")
            k("v_and_b32 v45, s4, v46")
            k("v_pk_mul_f32 v[44:45], v[44:45], %s op_sel_hi:[1,0]" % vr(EB + 2, 2))
            k("v_cvt_pk_bf16_f32 v46, v44, v45")
            k("v_lshlrev_b32 v44, 16, v46")
            k("v_and_b32 v45, s4, v46")
            k("v_lshlrev_b32 v46, 16, v%d" % dsk)
            k("v_and_b32 v47, s4, v%d" % dsk)
            k("v_pk_mul_f32 v[44:45], v[44:45], v[46:47]")
            k("v_cvt_pk_bf16_f32 v46, v44, v45")
            k("v_lshlrev_b32 v44, 16, v46")
            k("v_and_b32 v45, s4, v46")
            k("v_pk_add_f32 %s, %s, v[44:45]" % (vr(o, 2), vr(o, 2)))
            k("v_pk_add_f32 %s, %s, %s op_sel_hi:[1,0]" % (vr(o, 2), vr(o, 2), vr(EB, 2)))
            k("v_pk_add_f32 %s, %s, %s" % (vr(OWN + 4 * j + 2 * h, 2), vr(OWN + 4 * j + 2 * h, 2), vr(o, 2)))
    k("s_waitcnt lgkmcnt(0)")
    k("s_barrier")
    stamp(k, 4)
    RB = 80
    lg = Counter(k, "lgkmcnt", 15)
    srcs = {}
    n = 0
    for j in range(5):
        srcs[j] = []
        for src in range(3):
            k("ds_read_b128 %s, v16 offset:%d" % (vr(RB + 4 * n, 4), src * 6144 + j * 1024)); lg.issue(j)
            srcs[j].append(RB + 4 * n); n += 1
        if j == 4:
            for src in range(4):
                k("ds_read_b128 %s, v17 offset:%d" % (vr(RB + 4 * n, 4), src * 6144 + 5 * 1024)); lg.issue(j)
                srcs[j].append(RB + 4 * n); n += 1
    for j in range(5):
        lg.wait(j)
        o = OWN + 4 * j
        for r in srcs[j]:
            for h in range(2):
                k("v_pk_add_f32 %s, %s, %s" % (vr(o + 2 * h, 2), vr(o + 2 * h, 2), vr(r + 2 * h, 2)))
        if j < 4:
            k("buffer_store_dwordx4 %s, v6, s[84:87], s88 offen offset:%d" % (vr(o, 4), 64 * j))
        else:
            k("s_mov_b32 exec_hi, 0")
            k("buffer_store_dwordx4 %s, v6, s[84:87], s89 offen" % vr(o, 4))
    endpgm(k, 2, 4)
    k(done + ":")
    k("s_endpgm")
    return k

if __name__ == "__main__":
    STAMPS = "--stamps" in sys.argv
    pf = "--nopf" not in sys.argv
    ks = [gen_k1(prefetch=pf), gen_k2(prefetch=pf), gen_k3()]
    open(sys.argv[1] if len(sys.argv) > 1 else "k.s", "w").write(emit(ks))
```
